```python
import torch

def _softmax(x, axis=-1):
    return torch.softmax(x, dim=axis)
def _gelu(x):
    return torch.nn.functional.gelu(x, approximate="tanh")
def _silu(x):
    return torch.nn.functional.silu(x)
def _sigmoid(x):
    return torch.sigmoid(x)
def _layernorm(x, axis=-1, eps=1e-5):
    m = x.mean(dim=axis, keepdim=True)
    v = x.var(dim=axis, keepdim=True, unbiased=False)
    return (x - m) / torch.sqrt(v + eps)
def _scatter_add(tgt, idx, src, axis=0):
    return tgt.clone().index_add_(axis, idx, src)
def _segment_sum(src, seg, n):
    out = torch.zeros((n,) + src.shape[1:], dtype=src.dtype)
    return out.index_add_(0, seg, src)
def _pad(x, pw):
    flat = tuple(v for pair in reversed(pw) for v in pair)
    return torch.nn.functional.pad(x, flat)

kernel_name = 'gated_mix__linear_kernel_hedgehog__linear_kernel_hedgehog__prompt'

def setup_inputs():

    _w = (lambda a: (lambda t: t.to(torch.bfloat16) if t.is_floating_point() else t)(torch.as_tensor(a)))
    def _A_setup():
        B, S, D, H = 1, 2048, 448, 16
        Dh = D // H
        return {
            "x": _w((lambda *s: torch.randn(*s, dtype=torch.bfloat16) * 0.05)(B, S, D)),
            "wqkv": _w((lambda *s: torch.randn(*s, dtype=torch.bfloat16) * 0.8)(D, 3 * D)),
            "w_phi": _w((lambda *s: torch.randn(*s, dtype=torch.bfloat16) * 0.8)(H, Dh, Dh) * (Dh ** -0.5)),
            "wo": _w((lambda *s: torch.randn(*s, dtype=torch.bfloat16) * 0.05)(D, D)),
        }
    _A_in = _A_setup()

    def _B_setup():
        B, S, D, H = 1, 2048, 448, 16
        Dh = D // H
        return {
            "x": _w((lambda *s: torch.randn(*s, dtype=torch.bfloat16) * 0.05)(B, S, D)),
            "wqkv": _w((lambda *s: torch.randn(*s, dtype=torch.bfloat16) * 0.8)(D, 3 * D)),
            "w_phi": _w((lambda *s: torch.randn(*s, dtype=torch.bfloat16) * 0.8)(H, Dh, Dh) * (Dh ** -0.5)),
            "wo": _w((lambda *s: torch.randn(*s, dtype=torch.bfloat16) * 0.05)(D, D)),
        }
    _B_in = _B_setup()

    return {
        "A_x": _A_in["x"],
        "A_wqkv": _A_in["wqkv"],
        "A_w_phi": _A_in["w_phi"],
        "A_wo": _A_in["wo"],
        "B_x": _B_in["x"],
        "B_wqkv": _B_in["wqkv"],
        "B_w_phi": _B_in["w_phi"],
        "B_wo": _B_in["wo"],
        "gate_w": _w((lambda *s: torch.randn(*s, dtype=torch.bfloat16) * 0.05)(448) * 16.0),
    }

def reference(A_x, A_wqkv, A_w_phi, A_wo, B_x, B_wqkv, B_w_phi, B_wo, gate_w):
    def _A_ref(x, wqkv, w_phi, wo):
        B, S, D = x.shape
        H = 16; Dh = D // H
        qkv = (lambda x, *d: x.permute(*d))((x @ wqkv).reshape(B, S, 3, H, Dh), 2, 0, 3, 1, 4)
        q, k, v = qkv[0], qkv[1], qkv[2]
        pq = torch.einsum("bhsd,hdf->bhsf", q, w_phi)
        pk = torch.einsum("bhsd,hdf->bhsf", k, w_phi)
        phi_q = torch.concatenate([_softmax(pq, axis=-1), _softmax(-pq, axis=-1)], axis=-1)
        phi_k = torch.concatenate([_softmax(pk, axis=-1), _softmax(-pk, axis=-1)], axis=-1)
        kv = torch.einsum("bhsf,bhsd->bhfd", phi_k, v)
        z  = torch.einsum("bhsf->bhf", phi_k)
        num = torch.einsum("bhqf,bhfd->bhqd", phi_q, kv)
        den = torch.einsum("bhqf,bhf->bhq", phi_q, z)[..., None] + 1e-6
        o = num / den
        return (lambda x, *d: x.permute(*d))(o, 0, 2, 1, 3).reshape(B, S, D) @ wo

    def _B_ref(x, wqkv, w_phi, wo):
        B, S, D = x.shape
        H = 16; Dh = D // H
        qkv = (lambda x, *d: x.permute(*d))((x @ wqkv).reshape(B, S, 3, H, Dh), 2, 0, 3, 1, 4)
        q, k, v = qkv[0], qkv[1], qkv[2]
        pq = torch.einsum("bhsd,hdf->bhsf", q, w_phi)
        pk = torch.einsum("bhsd,hdf->bhsf", k, w_phi)
        phi_q = torch.concatenate([_softmax(pq, axis=-1), _softmax(-pq, axis=-1)], axis=-1)
        phi_k = torch.concatenate([_softmax(pk, axis=-1), _softmax(-pk, axis=-1)], axis=-1)
        kv = torch.einsum("bhsf,bhsd->bhfd", phi_k, v)
        z  = torch.einsum("bhsf->bhf", phi_k)
        num = torch.einsum("bhqf,bhfd->bhqd", phi_q, kv)
        den = torch.einsum("bhqf,bhf->bhq", phi_q, z)[..., None] + 1e-6
        o = num / den
        return (lambda x, *d: x.permute(*d))(o, 0, 2, 1, 3).reshape(B, S, D) @ wo

    x = A_x
    g = _sigmoid((x * gate_w).sum(-1, keepdims=True))
    a = _A_ref(x, A_wqkv, A_w_phi, A_wo)
    b = _B_ref(x, B_wqkv, B_w_phi, B_wo)
    return g * a + (1 - g) * b
```

```python
import re
class Asm:
    def __init__(self):
        self.lines = []
        self.nlabel = 0
    def __call__(self, s=""):
        for l in s.split("\n"):
            m = re.search(r"offset:(\d+)", l)
            if m:
                v = int(m.group(1)); op = l.strip().split()[0]
                if op.startswith("buffer_"): assert v < 4096, l
                elif op.startswith("ds_"): assert v < 65536, l
                elif op.startswith("global_"): assert v < 4096, l
            self.lines.append("  " + l.strip() if l.strip() and not l.strip().endswith(":") else l.strip())
    def c(self, s):
        self.lines.append("  ; " + s)
    def label(self, name):
        self.lines.append(name + ":")
    def newlabel(self, p="L"):
        self.nlabel += 1
        return f"{p}_{self.nlabel}"
    def text(self):
        return "\n".join(self.lines) + "\n"

def vr(a, n=1):
    return f"v{a}" if n == 1 else f"v[{a}:{a+n-1}]"
def sr(a, n=1):
    return f"s{a}" if n == 1 else f"s[{a}:{a+n-1}]"
def ar(a, n=1):
    return f"a{a}" if n == 1 else f"a[{a}:{a+n-1}]"

HEADER = """; Kernarg layout (96 bytes, ptrs only, base s[0:1]):
"""
KN = "gated_mix__linear_kernel_hedgehog__linear_kernel_hedgehog__prompt_kernel"

def wrap(body, grid, block, lds, nvgpr=256, nsgpr=102, accum=256, kn=KN, header=HEADER):
    t = header
    t += f"; @launch grid=({grid},1,1) block=({block},1,1) lds={lds}\n"
    t += '.amdgcn_target "amdgcn-amd-amdhsa--gfx950"\n.text\n'
    t += f".globl {kn}\n.p2align 8\n.type {kn},@function\n{kn}:\n"
    t += body
    t += f"""
.section .rodata,"a"
.p2align 6
.amdhsa_kernel {kn}
  .amdhsa_next_free_vgpr {nvgpr}
  .amdhsa_next_free_sgpr {nsgpr}
  .amdhsa_accum_offset {accum}
  .amdhsa_group_segment_fixed_size 0
  .amdhsa_kernarg_size 96
  .amdhsa_user_sgpr_count 2
  .amdhsa_user_sgpr_kernarg_segment_ptr 1
  .amdhsa_system_sgpr_workgroup_id_x 1
.end_amdhsa_kernel
"""
    return t
```

```python
import re, sys
TRANS = ("v_exp_f32","v_log_f32","v_rcp_f32","v_rsq_f32","v_sqrt_f32","v_sin_f32","v_cos_f32","v_rcp_iflag_f32")
def regs(tok):
    tok = tok.strip()
    neg = tok.lstrip("-").replace("abs(","").replace(")","").replace("|","")
    m = re.fullmatch(r"([vsa])(\d+)", neg)
    if m: return [(m.group(1), int(m.group(2)))]
    m = re.fullmatch(r"([vsa])\[(\d+):(\d+)\]", neg)
    if m: return [(m.group(1), i) for i in range(int(m.group(2)), int(m.group(3))+1)]
    if neg == "vcc": return [("s",106),("s",107)]
    if neg == "vcc_lo": return [("s",106)]
    if neg == "vcc_hi": return [("s",107)]
    if neg == "exec": return [("s",126),("s",127)]
    if neg == "m0": return [("s",124)]
    return []
def parse(line):
    line = line.split(";")[0].strip()
    if not line or line.endswith(":") or line.startswith("."): return None
    parts = line.split(None,1)
    op = parts[0]
    ops = []
    if len(parts) > 1:
        s = parts[1]; cur=""; depth=0
        for ch in s:
            if ch=="[": depth+=1
            if ch=="]": depth-=1
            if ch=="," and depth==0: ops.append(cur.strip()); cur=""
            else: cur+=ch
        ops.append(cur.strip())
        ops[-1] = ops[-1].split()[0] if ops[-1] else ops[-1]
    return op, ops, line
def classify(op):
    if op.startswith("v_mfma"): return "mfma"
    if op.startswith("v_"): return "valu"
    if op.startswith("ds_"): return "ds"
    if op.startswith("buffer_") or op.startswith("global_"): return "vmem"
    if op.startswith("s_"): return "salu"
    return "other"
def rw(op, ops, line):
    c = classify(op)
    W=[];R=[]
    if c=="mfma":
        W=regs(ops[0]); R=regs(ops[1])+regs(ops[2])+regs(ops[3])
    elif c=="valu":
        if op == "v_nop": pass
        elif op.startswith("v_cmp"):
            W=regs(ops[0]);
            for o in ops[1:]: R+=regs(o)
            if op.startswith("v_cmpx"): W+=regs("exec")
        elif op.startswith("v_permlane") and "swap" in op:
            W=regs(ops[0])+regs(ops[1]); R=list(W)
        elif op.startswith("v_readfirstlane") or op.startswith("v_readlane"):
            W=regs(ops[0]);
            for o in ops[1:]: R+=regs(o)
        else:
            W=regs(ops[0])
            rest=ops[1:]
            if "_co_" in op: W+=regs(ops[1]); rest=ops[2:]
            for o in rest: R+=regs(o)
            if op.startswith("v_fmac") or op.startswith("v_dot2c") or op.startswith("v_writelane"): R+=regs(ops[0])
            if op.startswith("v_cndmask") and len(ops)==3: R+=regs("vcc")
    elif c=="ds":
        if op.startswith("ds_read") or op.startswith("ds_bpermute") or op.startswith("ds_swizzle"):
            W=regs(ops[0])
            for o in ops[1:]: R+=regs(o)
        else:
            for o in ops: R+=regs(o)
    elif c=="vmem":
        if " lds" in line:
            for o in ops: R+=regs(o)
            R+=regs("m0")
        elif "load" in op:
            W=regs(ops[0])
            for o in ops[1:]: R+=regs(o)
            if "d16" in op: R+=regs(ops[0])
        else:
            for o in ops: R+=regs(o)
    elif c=="salu":
        if op.startswith("s_cmp") or op.startswith("s_cbranch") or op in("s_waitcnt","s_barrier","s_nop","s_endpgm","s_sleep","s_branch","s_setprio") or op.startswith("s_bitcmp"):
            for o in ops: R+=regs(o)
        else:
            if ops: W=regs(ops[0])
            for o in ops[1:]: R+=regs(o)
            if "saveexec" in op: W+=regs("exec"); R+=regs("exec")
    return W,R
def passes(op):
    if "32x32x16" in op or "32x32x8" in op: return 8
    if "16x16x32" in op or "16x16x16" in op: return 4
    raise ValueError(op)
def lint(text):
    errs=[]
    pos=0
    lastw={}
    mfma_c=[]
    stores=[]
    for ln,line in enumerate(text.split("\n"),1):
        p=parse(line)
        if p is None: continue
        op,ops,l=p
        c=classify(op)
        W,R=rw(op,ops,l)
        def need(r, n, why):
            w=lastw.get(r)
            d=pos-w[0]-1
            if d<n: errs.append(f"line {ln}: '{l}' needs {n} wait states after '{w[2]}' ({why}) has {d}")
        Rset=set(R); Wset=set(W)
        for r in Rset:
            w=lastw.get(r)
            if not w: continue
            k=w[1]
            if k=="mfma":
                ps=w[3]
                if c=="mfma":
                    Cregs=set(regs(ops[3]))
                    if r in set(regs(ops[1])+regs(ops[2])): need(r, ps+4, "mfma D->A/B")
                    elif r in Cregs:
                        if not (set(w[4])==Cregs and passes(op)==ps): need(r, ps+2, "mfma D->C overlap")
                elif c in("valu","vmem","ds"): need(r, ps+4, "mfma D->valu/mem read")
            elif k=="valu":
                if r[0] in("v","a"):
                    if c=="mfma": need(r,2,"valu->mfma")
                    if op.startswith("v_permlane"): need(r,2,"valu->permlane")
                    if op.startswith("v_readfirstlane") or op.startswith("v_readlane"): need(r,1,"valu->readlane")
                    if "dpp" in l or "quad_perm" in l or "row_" in l: need(r,2,"valu->dpp")
                    if w[2].split()[0] in TRANS and c=="valu" and op not in TRANS: need(r,1,"trans->valu")
                    if w[2].split()[0] in TRANS and c in("mfma",): need(r,2,"trans->mfma")
                else:
                    if c=="valu": need(r,2,"valu sgpr->valu")
                    if c=="vmem": need(r,5,"valu sgpr->vmem")
            elif k=="salu":
                if r==("s",124) and c=="vmem": need(r,1,"m0->dma")
        for r in Wset:
            w=lastw.get(r)
            if w and w[1]=="mfma" and c in("valu","vmem","ds"):
                need(r, w[3]+4, "mfma D WAW")
            if c=="valu":
                for (mp,cr,ps) in mfma_c:
                    if r in cr:
                        d=pos-mp-1; n={4:3,8:7}[ps]
                        if d<n: errs.append(f"line {ln}: '{l}' WAR on mfma srcC needs {n} has {d}")
                for (sp,dr) in stores:
                    if r in dr and pos-sp-1<2: errs.append(f"line {ln}: '{l}' overwrites store data too early")
        if c=="mfma":
            mfma_c.append((pos,set(regs(ops[3])),passes(op))); mfma_c=mfma_c[-8:]
        if c=="vmem" and "store" in op and ("x4" in op or "x3" in op):
            stores.append((pos,set(regs(ops[0]) if op.startswith("buffer") else regs(ops[1])))); stores=stores[-4:]
        for r in Wset:
            if c=="mfma": lastw[r]=(pos,"mfma",l,passes(op),regs(ops[0]))
            else: lastw[r]=(pos,c,l)
        if op=="s_nop": pos+=int(ops[0],0)+1
        else: pos+=1
    return errs
if __name__=="__main__":
    e=lint(open(sys.argv[1]).read())
    for x in e: print(x)
    print(len(e),"hazard issues")
```

```python
import sys, json, importlib
import asmgen, lint
mod = importlib.import_module(sys.argv[1])
opts = json.loads(sys.argv[3]) if len(sys.argv) > 3 else {}
t, n = mod.gen(stamps=None, opts=opts)
e = lint.lint(t)
assert not e, e
hdr = open('gated_mix__linear_kernel_hedgehog__linear_kernel_hedgehog__prompt.s.ref').read().split('; Override')[0]
t = t.replace(asmgen.HEADER, hdr)
open(sys.argv[2], 'w').write(t)
print("wrote", sys.argv[2], len(t))
```

```python
import re
class Asm:
    def __init__(self):
        self.lines = []
        self.nlabel = 0
    def __call__(self, s=""):
        for l in s.split("\n"):
            m = re.search(r"offset:(\d+)", l)
            if m:
                v = int(m.group(1)); op = l.strip().split()[0]
                if op.startswith("buffer_"): assert v < 4096, l
                elif op.startswith("ds_"): assert v < 65536, l
                elif op.startswith("global_"): assert v < 4096, l
            self.lines.append("  " + l.strip() if l.strip() and not l.strip().endswith(":") else l.strip())
    def c(self, s):
        self.lines.append("  ; " + s)
    def label(self, name):
        self.lines.append(name + ":")
    def newlabel(self, p="L"):
        self.nlabel += 1
        return f"{p}_{self.nlabel}"
    def text(self):
        return "\n".join(self.lines) + "\n"

def vr(a, n=1):
    return f"v{a}" if n == 1 else f"v[{a}:{a+n-1}]"
def sr(a, n=1):
    return f"s{a}" if n == 1 else f"s[{a}:{a+n-1}]"
def ar(a, n=1):
    return f"a{a}" if n == 1 else f"a[{a}:{a+n-1}]"

HEADER = """; Kernarg layout (96 bytes, ptrs only, base s[0:1]):
"""
KN = "gated_mix__linear_kernel_hedgehog__linear_kernel_hedgehog__prompt_kernel"

def wrap(body, grid, block, lds, nvgpr=256, nsgpr=102, accum=256, kn=KN, header=HEADER):
    t = header
    t += f"; @launch grid=({grid},1,1) block=({block},1,1) lds={lds}\n"
    t += '.amdgcn_target "amdgcn-amd-amdhsa--gfx950"\n.text\n'
    t += f".globl {kn}\n.p2align 8\n.type {kn},@function\n{kn}:\n"
    t += body
    t += f"""
.section .rodata,"a"
.p2align 6
.amdhsa_kernel {kn}
  .amdhsa_next_free_vgpr {nvgpr}
  .amdhsa_next_free_sgpr {nsgpr}
  .amdhsa_accum_offset {accum}
  .amdhsa_group_segment_fixed_size 0
  .amdhsa_kernarg_size 96
  .amdhsa_user_sgpr_count 2
  .amdhsa_user_sgpr_kernarg_segment_ptr 1
  .amdhsa_system_sgpr_workgroup_id_x 1
.end_amdhsa_kernel
"""
    return t

class Sched(Asm):
    def __init__(self):
        super().__init__()
        self.nds = 0
    def ds(self, s):
        self(s); self.nds += 1
        return self.nds
    def wait_ds(self, tok, extra=""):
        n = self.nds - tok
        n = min(n, 15)
        self(f"s_waitcnt lgkmcnt({n}){extra}")
    def ds_all(self):
        self("s_waitcnt lgkmcnt(0)")

def interleave(a, main, side, every, start=0):
    si = 0
    for i, m in enumerate(main):
        m()
        if i >= start and (i - start) % every == every - 1 and si < len(side):
            side[si](); si += 1
    while si < len(side):
        side[si](); si += 1
```
